```python
import torch

def _softmax(x, axis=-1):
    return torch.softmax(x, dim=axis)
def _gelu(x):
    return torch.nn.functional.gelu(x, approximate="tanh")
def _silu(x):
    return torch.nn.functional.silu(x)
def _sigmoid(x):
    return torch.sigmoid(x)
def _layernorm(x, axis=-1, eps=1e-5):
    m = x.mean(dim=axis, keepdim=True)
    v = x.var(dim=axis, keepdim=True, unbiased=False)
    return (x - m) / torch.sqrt(v + eps)
def _scatter_add(tgt, idx, src, axis=0):
    return tgt.clone().index_add_(axis, idx, src)
def _segment_sum(src, seg, n):
    out = torch.zeros((n,) + src.shape[1:], dtype=src.dtype)
    return out.index_add_(0, seg, src)
def _pad(x, pw):
    flat = tuple(v for pair in reversed(pw) for v in pair)
    return torch.nn.functional.pad(x, flat)

kernel_name = 'standalone__gqa_softmax__near_ridge'

def setup_inputs():

    _w = (lambda a: (lambda t: t.to(torch.bfloat16) if t.is_floating_point() else t)(torch.as_tensor(a)))
    B, Hq, Hkv, Sq, Sk, D = 16, 32, 8, 64, 512, 128
    return {
        "q": _w((lambda *s: torch.randn(*s, dtype=torch.bfloat16) * 0.8)(B, Hq, Sq, D)),
        "k": _w((lambda *s: torch.randn(*s, dtype=torch.bfloat16) * 0.8)(B, Hkv, Sk, D)),
        "v": _w((lambda *s: torch.randn(*s, dtype=torch.bfloat16) * 0.05)(B, Hkv, Sk, D)),
    }

def reference(q, k, v):
    B, Hq, Sq, D = q.shape
    Hkv = k.shape[1]
    rep = Hq // Hkv
    k = (lambda x, n, axis: torch.repeat_interleave(x, n, dim=axis))(k, rep, axis=1)
    v = (lambda x, n, axis: torch.repeat_interleave(x, n, dim=axis))(v, rep, axis=1)
    scale = D ** -0.5
    scores = torch.einsum("bhqd,bhkd->bhqk", q, k) * scale
    p = _softmax(scores, axis=-1)
    return torch.einsum("bhqk,bhkd->bhqd", p, v)
```

```python
KN = "standalone__gqa_softmax__near_ridge_kernel"
def make(fname, body, iters=64, threads=256, grid=256, lds=65536, pre=""):
    txt = f"; @launch grid=({grid},1,1) block=({threads},1,1) lds={lds}\n"
    txt += f""".amdgcn_target "amdgcn-amd-amdhsa--gfx950"
.text
.globl {KN}
.p2align 8
.type {KN},@function
{KN}:
    s_load_dwordx2 s[44:45], s[0:1], 40
    v_and_b32 v1, 63, v0
    v_lshrrev_b32 v7, 6, v0
    s_nop 1
    v_readfirstlane_b32 s28, v7
    v_lshlrev_b32 v8, 4, v1
    v_lshlrev_b32 v9, 3, v1
    s_mov_b32 s40, 0x3e0293ee
"""
    for i in range(10, 250): txt += f"    v_mov_b32 v{i}, 1.0\n"
    for i in range(0, 250): txt += f"    v_accvgpr_write_b32 a{i}, 0\n"
    txt += pre
    txt += f"""    s_waitcnt lgkmcnt(0)
    s_mov_b32 s20, 0
    s_barrier
.p2align 6
L_warm:
"""
    txt += f"""    s_memtime s[48:49]
    s_waitcnt lgkmcnt(0)
    s_mov_b32 s21, {iters}
.p2align 6
L_loop:
"""
    txt += "".join("    " + l + "\n" for l in body)
    txt += f"""    s_sub_u32 s21, s21, 1
    s_cmp_lg_u32 s21, 0
    s_cbranch_scc1 L_loop
    s_memtime s[50:51]
    s_waitcnt lgkmcnt(0)
    s_add_u32 s20, s20, 1
    s_cmp_lt_u32 s20, 2
    s_cbranch_scc1 L_warm
    s_sub_u32 s3, s50, s48
    s_lshl_b32 s22, s2, 4
    s_add_u32 s22, s22, s28
    s_lshl_b32 s22, s22, 2
    s_mov_b32 s4, s44
    s_mov_b32 s5, s45
    s_mov_b32 s6, 0x100000
    s_mov_b32 s7, 0x20000
    v_mov_b32 v2, s3
    v_mov_b32 v3, 0
    s_nop 4
    buffer_store_dword v2, v3, s[4:7], s22 offen
    s_endpgm
.section .rodata,"a"
.p2align 6
.amdhsa_kernel {KN}
  .amdhsa_next_free_vgpr {512 if threads <= 256 else 256}
  .amdhsa_next_free_sgpr 102
  .amdhsa_accum_offset {256 if threads <= 256 else 128}
  .amdhsa_group_segment_fixed_size 0
  .amdhsa_kernarg_size 48
  .amdhsa_user_sgpr_count 2
  .amdhsa_user_sgpr_kernarg_segment_ptr 1
  .amdhsa_system_sgpr_workgroup_id_x 1
.end_amdhsa_kernel
"""
    open(fname, "w").write(txt)
```

```python
from mb import make
import sys
names = []
def M(name, body, **kw):
    make(f"mb_{name}.s", body, **kw); names.append(f"mb_{name}.s")
def mf(D, i, cd='v', chain=True):
    return f"v_mfma_f32_32x32x16_bf16 {cd}[{D}:{D+15}], a[{4*(i%16)}:{4*(i%16)+3}], a[{128+4*(i%8)}:{128+4*(i%8)+3}], {cd}[{D}:{D+15}]"
def gaps(fill, cd='v', acc=1, base=104):
    body = []
    for i in range(16):
        body.append(mf(base + 16 * (i % acc), i, cd))
        body += fill(i)
    return body
M("mfma", gaps(lambda i: []))
M("fma4", gaps(lambda i: [f"v_fma_f32 v{40+4*(i%8)+k}, v{40+4*(i%8)+k}, s40, v18" for k in range(4)]))
M("add4", gaps(lambda i: [f"v_add_f32 v{40+4*(i%8)+k}, v{40+4*(i%8)+k}, v18" for k in range(4)]))
M("add5", gaps(lambda i: [f"v_add_f32 v{40+6*(i%8)+k}, v{40+6*(i%8)+k}, v18" for k in range(5)]))
M("add6", gaps(lambda i: [f"v_add_f32 v{40+6*(i%8)+k}, v{40+6*(i%8)+k}, v18" for k in range(6)]))
M("fma6", gaps(lambda i: [f"v_fma_f32 v{40+6*(i%8)+k}, v{40+6*(i%8)+k}, s40, v18" for k in range(6)]))
M("addchain4", gaps(lambda i: [f"v_add_f32 v17, v17, v{40+4*(i%8)+k}" for k in range(4)]))
M("exp2", gaps(lambda i: [f"v_exp_f32 v{40+4*(i%8)+k}, v{40+4*(i%8)+k}" for k in range(2)]))
M("exp3", gaps(lambda i: [f"v_exp_f32 v{40+4*(i%8)+k}, v{40+4*(i%8)+k}" for k in range(3)]))
M("cvt4", gaps(lambda i: [f"v_cvt_pk_bf16_f32 v{24+k}, v{40+4*(i%8)+k}, v{41+4*(i%8)+k}" for k in range(4)]))
M("max4", gaps(lambda i: [f"v_max3_f32 v19, v19, v{40+4*(i%8)+k}, v{41+4*(i%8)+k}" for k in range(4)]))
M("fma4_acc4", gaps(lambda i: [f"v_fma_f32 v{40+4*(i%8)+k}, v{40+4*(i%8)+k}, s40, v18" for k in range(4)], acc=4))
M("fma4_agpr", gaps(lambda i: [f"v_fma_f32 v{40+4*(i%8)+k}, v{40+4*(i%8)+k}, s40, v18" for k in range(4)], cd='a', base=160))
M("fma4_wait", gaps(lambda i: [f"v_fma_f32 v{40+4*(i%8)+k}, v{40+4*(i%8)+k}, s40, v18" for k in range(4)] + ["s_waitcnt lgkmcnt(3)"]))
M("fma4_ds_wait", gaps(lambda i: [f"ds_read_b128 a[{4*((i+4)%16)}:{4*((i+4)%16)+3}], v8 offset:{1024*i}"] + [f"v_fma_f32 v{40+4*(i%8)+k}, v{40+4*(i%8)+k}, s40, v18" for k in range(4)] + ["s_waitcnt lgkmcnt(3)"]))
M("ds_wait", gaps(lambda i: [f"ds_read_b128 a[{4*((i+4)%16)}:{4*((i+4)%16)+3}], v8 offset:{1024*i}"] + ["s_waitcnt lgkmcnt(3)"]))
M("tr2_wait", gaps(lambda i: [f"ds_read_b64_tr_b16 a[{4*((i+4)%16)}:{4*((i+4)%16)+1}], v9 offset:{1024*i}", f"ds_read_b64_tr_b16 a[{4*((i+4)%16)+2}:{4*((i+4)%16)+3}], v9 offset:{1024*i+512}"] + ["s_waitcnt lgkmcnt(6)"]))
M("tr2_fma4_wait", gaps(lambda i: [f"ds_read_b64_tr_b16 a[{4*((i+4)%16)}:{4*((i+4)%16)+1}], v9 offset:{1024*i}", f"ds_read_b64_tr_b16 a[{4*((i+4)%16)+2}:{4*((i+4)%16)+3}], v9 offset:{1024*i+512}"] + [f"v_fma_f32 v{40+4*(i%8)+k}, v{40+4*(i%8)+k}, s40, v18" for k in range(4)] + ["s_waitcnt lgkmcnt(6)"]))
M("valu_only_add64", [f"v_add_f32 v{40+(i%32)}, v{40+(i%32)}, v18" for i in range(64)])
M("valu_only_fma64", [f"v_fma_f32 v{40+(i%32)}, v{40+(i%32)}, s40, v18" for i in range(64)])
M("valu_only_exp64", [f"v_exp_f32 v{40+(i%32)}, v{40+(i%32)}" for i in range(64)])
M("valu_only_chain64", [f"v_add_f32 v17, v17, v{40+(i%32)}" for i in range(64)])
M("valu_only_pkmul32", [f"v_pk_mul_f32 v[{40+2*(i%16)}:{41+2*(i%16)}], v[{40+2*(i%16)}:{41+2*(i%16)}], v[18:19]" for i in range(32)])
M("snop64", ["s_nop 0"] * 64)
print(" ".join(names))
```
